```python
import torch

def _softmax(x, axis=-1):
    return torch.softmax(x, dim=axis)
def _gelu(x):
    return torch.nn.functional.gelu(x, approximate="tanh")
def _silu(x):
    return torch.nn.functional.silu(x)
def _sigmoid(x):
    return torch.sigmoid(x)
def _layernorm(x, axis=-1, eps=1e-5):
    m = x.mean(dim=axis, keepdim=True)
    v = x.var(dim=axis, keepdim=True, unbiased=False)
    return (x - m) / torch.sqrt(v + eps)
def _scatter_add(tgt, idx, src, axis=0):
    return tgt.clone().index_add_(axis, idx, src)
def _segment_sum(src, seg, n):
    out = torch.zeros((n,) + src.shape[1:], dtype=src.dtype)
    return out.index_add_(0, seg, src)
def _pad(x, pw):
    flat = tuple(v for pair in reversed(pw) for v in pair)
    return torch.nn.functional.pad(x, flat)

kernel_name = 'parallel_sum__ssm_conv_s5__glu_gated_bilinear__prompt'

def setup_inputs():

    _w = (lambda a: (lambda t: t.to(torch.bfloat16) if t.is_floating_point() else t)(torch.as_tensor(a)))
    def _A_setup():
        B, S, D = 1, 2048, 512
        P = D
        Lambda_re = -0.5 * (lambda _x: torch.exp(torch.as_tensor(_x)))((lambda *s: torch.randn(*s, dtype=torch.bfloat16) * 0.2)(P))
        Lambda_im = (lambda *s: torch.randn(*s, dtype=torch.bfloat16) * 0.8)(P) * 1.0
        B_re = (lambda *s: torch.randn(*s, dtype=torch.bfloat16) * 0.2)(P, D) * (D ** -0.5)
        B_im = (lambda *s: torch.randn(*s, dtype=torch.bfloat16) * 0.2)(P, D) * (D ** -0.5)
        C_re = (lambda *s: torch.randn(*s, dtype=torch.bfloat16) * 0.2)(D, P) * (P ** -0.5)
        C_im = (lambda *s: torch.randn(*s, dtype=torch.bfloat16) * 0.2)(D, P) * (P ** -0.5)
        log_dt = (lambda *s: torch.randn(*s, dtype=torch.bfloat16) * 0.2)(P) * 0.3 - 2.0
        Dskip = (lambda *s: torch.randn(*s, dtype=torch.bfloat16) * 0.05)(D)
        return {
            "x": _w((lambda *s: torch.randn(*s, dtype=torch.bfloat16) * 0.05)(B, S, D)),
            "Lambda_re": _w(Lambda_re),
            "Lambda_im": _w(Lambda_im),
            "B_re": _w(B_re),
            "B_im": _w(B_im),
            "C_re": _w(C_re),
            "C_im": _w(C_im),
            "log_dt": _w(log_dt),
            "Dskip": _w(Dskip),
        }
    _A_in = _A_setup()

    def _B_setup():
        B, S, D, F = 1, 2048, 512, 1792
        return {
            "x": _w((lambda *s: torch.randn(*s, dtype=torch.bfloat16) * 0.05)(B, S, D)),
            "w_gate": _w((lambda *s: torch.randn(*s, dtype=torch.bfloat16) * 0.4)(D, F) * (D ** -0.5)),
            "w_up": _w((lambda *s: torch.randn(*s, dtype=torch.bfloat16) * 0.4)(D, F) * (D ** -0.5)),
            "w_down": _w((lambda *s: torch.randn(*s, dtype=torch.bfloat16) * 0.4)(F, D) * (F ** -0.5)),
        }
    _B_in = _B_setup()

    return {
        "A_x": _A_in["x"],
        "A_Lambda_re": _A_in["Lambda_re"],
        "A_Lambda_im": _A_in["Lambda_im"],
        "A_B_re": _A_in["B_re"],
        "A_B_im": _A_in["B_im"],
        "A_C_re": _A_in["C_re"],
        "A_C_im": _A_in["C_im"],
        "A_log_dt": _A_in["log_dt"],
        "A_Dskip": _A_in["Dskip"],
        "B_x": _B_in["x"],
        "B_w_gate": _B_in["w_gate"],
        "B_w_up": _B_in["w_up"],
        "B_w_down": _B_in["w_down"],
    }

def reference(A_x, A_Lambda_re, A_Lambda_im, A_B_re, A_B_im, A_C_re, A_C_im, A_log_dt, A_Dskip, B_x, B_w_gate, B_w_up, B_w_down):
    def _A_ref(x, Lambda_re, Lambda_im, B_re, B_im, C_re, C_im, log_dt, Dskip):
        Bsz, L, H = x.shape
        Lam = Lambda_re + 1j * Lambda_im
        Bmat = B_re + 1j * B_im
        Cmat = C_re + 1j * C_im
        dt = torch.exp(log_dt)
        Lam_bar = torch.exp(dt * Lam)
        B_bar = ((Lam_bar - 1.0) / Lam)[:, None] * Bmat
        Bu = torch.einsum("bld,pd->blp", x + 0j, B_bar)
        h = torch.zeros_like(Bu[:, 0, :])
        hs = []
        for t in range(L):
            h = Lam_bar[None, :] * h + Bu[:, t, :]
            hs.append(h)
        hseq = torch.stack(hs, 1)
        y = 2.0 * torch.einsum("blp,dp->bld", hseq, Cmat).real + x * Dskip[None, None, :]
        return y

    def _B_ref(x, w_gate, w_up, w_down):
        g = torch.einsum("bsd,df->bsf", x, w_gate)
        u = torch.einsum("bsd,df->bsf", x, w_up)
        h = g * u
        return torch.einsum("bsf,fd->bsd", h, w_down)

    x = A_x
    xn = _layernorm(x, axis=-1)
    return x + _A_ref(xn, A_Lambda_re, A_Lambda_im, A_B_re, A_B_im, A_C_re, A_C_im, A_log_dt, A_Dskip) + _B_ref(xn, B_w_gate, B_w_up, B_w_down)
```

```python
import re

_REG = re.compile(r'\b([vas])(\d+)\b|\b([vas])\[(\d+):(\d+)\]')
TRANS = ('v_exp_f32', 'v_log_f32', 'v_rcp_f32', 'v_rsq_f32', 'v_sqrt_f32', 'v_sin_f32', 'v_cos_f32')


def regs_of(tok):
    out = []
    for m in _REG.finditer(tok):
        if m.group(1):
            out.append((m.group(1), int(m.group(2))))
        else:
            out += [(m.group(3), i) for i in range(int(m.group(4)), int(m.group(5)) + 1)]
    if re.search(r'\bvcc\b', tok):
        out += [('s', 106), ('s', 107)]
    if re.search(r'\bm0\b', tok):
        out.append(('s', 124))
    if re.search(r'\bexec\b', tok):
        out += [('s', 126), ('s', 127)]
    return out


class Ins:
    __slots__ = ('text', 'op', 'cls', 'defs', 'uses', 'srcc', 'data', 'states')

    def __init__(self, text):
        self.text = text
        t = text.split(';')[0].strip()
        parts = t.split(None, 1)
        self.op = op = parts[0]
        rest = parts[1] if len(parts) > 1 else ''
        ops = [o.strip() for o in re.split(r',(?![^\[]*\])', rest)] if rest else []
        self.states = 1
        self.srcc = []
        self.data = []
        defs, uses = [], []
        if op.startswith('v_mfma'):
            cls = 'mfma'
            defs = regs_of(ops[0])
            uses = regs_of(ops[1]) + regs_of(ops[2])
            self.srcc = regs_of(ops[3])
        elif op.startswith('v_'):
            cls = 'valu'
            if op.startswith('v_cmp'):
                defs = regs_of(ops[0]); uses = sum((regs_of(o) for o in ops[1:]), [])
            elif op.startswith('v_permlane') and 'swap' in op:
                defs = regs_of(ops[0]) + regs_of(ops[1]); uses = list(defs)
            elif op.startswith(('v_add_co', 'v_sub_co', 'v_addc_co', 'v_subb_co')):
                defs = regs_of(ops[0]) + regs_of(ops[1]); uses = sum((regs_of(o) for o in ops[2:]), [])
            else:
                defs = regs_of(ops[0]); uses = sum((regs_of(o) for o in ops[1:]), [])
                if op.startswith(('v_fmac', 'v_dot2c', 'v_pk_fmac')):
                    uses += defs
        elif op.startswith('ds_'):
            cls = 'ds'
            if op.startswith('ds_read') or op.startswith('ds_bpermute') or op.startswith('ds_swizzle'):
                defs = regs_of(ops[0]); uses = sum((regs_of(o) for o in ops[1:]), [])
            else:
                uses = sum((regs_of(o) for o in ops), [])
        elif op.startswith(('buffer_', 'global_')):
            cls = 'vmem'
            islds = bool(re.search(r'\blds\b', rest)) or '_lds_' in op
            if 'load' in op and not islds:
                defs = regs_of(ops[0]); uses = sum((regs_of(o) for o in ops[1:]), [])
            else:
                uses = sum((regs_of(o) for o in ops), [])
                if islds:
                    uses.append(('s', 124))
                if 'store' in op and ('x3' in op or 'x4' in op):
                    self.data = regs_of(ops[0] if op.startswith('buffer_') else ops[1])
                if 'atomic' in op and re.search(r'\bsc0\b', rest):
                    defs = regs_of(ops[0])
        elif op.startswith('s_'):
            cls = 'salu'
            if op == 's_nop':
                self.states = int(ops[0], 0) + 1
            elif op.startswith(('s_cmp', 's_cbranch', 's_branch', 's_waitcnt', 's_barrier', 's_endpgm', 's_sleep', 's_setprio', 's_bitcmp')):
                uses = sum((regs_of(o) for o in ops), [])
            else:
                defs = regs_of(ops[0]) if ops else []
                uses = sum((regs_of(o) for o in ops[1:]), [])
                if 'saveexec' in op:
                    defs += [('s', 126), ('s', 127)]
        else:
            raise ValueError('unknown instruction: ' + text)
        self.cls, self.defs, self.uses = cls, defs, uses


def need_states(p, c):
    n = 0
    pd = set(p.defs)
    if p.cls == 'valu':
        pv = {r for r in pd if r[0] != 's'}
        ps = {r for r in pd if r[0] == 's'}
        if c.cls == 'mfma' and pv & set(c.uses + c.srcc):
            n = max(n, 2)
        if c.cls == 'valu':
            cu = set(c.uses)
            if p.op.startswith(TRANS) and not c.op.startswith(TRANS) and pv & cu:
                n = max(n, 1)
            if p.op.startswith(TRANS) and pv & cu:
                n = max(n, 1)
            if c.op.startswith('v_permlane') and pv & cu:
                n = max(n, 2)
            if ('dpp' in c.op or 'row_' in c.text or 'quad_perm' in c.text) and pv & cu:
                n = max(n, 2)
            if c.op.startswith(('v_readlane', 'v_readfirstlane')) and pv & cu:
                n = max(n, 1)
            if ps & cu:
                n = max(n, 4 if c.op.startswith(('v_readlane', 'v_writelane')) else 2)
            if p.op.startswith('v_dot') and pv & (cu | set(c.defs)):
                same = c.op == p.op
                if not same:
                    n = max(n, 3)
                else:
                    ab = set(c.uses) - set(c.defs) if c.op.startswith('v_dot2c') else None
                    if ab is None:
                        toks = c.text.split(',')
                        ab = set(regs_of(toks[1]) + regs_of(toks[2]))
                    if pv & ab:
                        n = max(n, 3)
            if 'sdwa' in p.op and pv & cu:
                n = max(n, 1)
        if c.cls in ('vmem', 'ds') and p.op.startswith('v_dot') and pv & set(c.uses):
            n = max(n, 3)
        if c.cls == 'vmem' and ps & set(c.uses):
            n = max(n, 5)
        if c.cls == 'salu' and ps & set(c.uses):
            n = max(n, 2)
    elif p.cls == 'mfma':
        if c.cls == 'mfma':
            if pd & set(c.uses):
                n = max(n, 12)
            if pd & set(c.srcc) and set(c.srcc) != pd:
                n = max(n, 10)
            if pd & set(c.defs) and not (pd & set(c.srcc)):
                n = max(n, 10)
        elif c.cls in ('valu', 'vmem', 'ds'):
            if pd & (set(c.uses) | set(c.defs)):
                n = max(n, 12)
            if c.cls == 'valu' and set(p.srcc) & set(c.defs):
                n = max(n, 7)
    elif p.cls == 'salu':
        if ('s', 124) in pd and c.cls == 'vmem' and ('s', 124) in c.uses:
            n = max(n, 1)
    elif p.cls == 'vmem':
        if p.data and set(p.data) & set(c.defs):
            n = max(n, 2)
    return n


class Asm:
    def __init__(self):
        self.out = []
        self.hist = []
        self.vm = 0
        self.lg = 0
        self.nops = 0
        self.ninstr = 0

    def raw(self, s):
        self.out.append(s)

    def comment(self, s):
        self.out.append('    ; ' + s)

    def label(self, name):
        self.out.append(name + ':')

    def fence(self):
        self.i('s_nop 11')
        self.hist = []

    def i(self, text):
        ins = Ins(text)
        dist = 0
        need = 0
        for p in reversed(self.hist):
            n = need_states(p, ins)
            if n > dist:
                need = max(need, n - dist)
            dist += p.states
            if dist >= 13:
                break
        if need > 0:
            nop = Ins('s_nop %d' % (need - 1))
            self.out.append('    ' + nop.text)
            self.hist.append(nop)
            self.nops += 1
            self.ninstr += 1
        self.out.append('    ' + text)
        self.hist.append(ins)
        self.hist = self.hist[-16:]
        self.ninstr += 1
        if ins.cls == 'vmem' and not ins.op.startswith(('buffer_wbl2', 'buffer_inv')):
            self.vm += 1
            return self.vm - 1
        if ins.cls == 'ds':
            self.lg += 1
            return self.lg - 1
        return None

    def wait(self, vm=None, lg=None):
        s = []
        if vm is not None:
            s.append('vmcnt(%d)' % min(63, self.vm - 1 - vm))
        if lg is not None:
            s.append('lgkmcnt(%d)' % min(15, self.lg - 1 - lg))
        self.i('s_waitcnt ' + ' '.join(s))

    def wait_all(self, vm=True, lg=True):
        s = []
        if vm:
            s.append('vmcnt(0)')
        if lg:
            s.append('lgkmcnt(0)')
        self.i('s_waitcnt ' + ' '.join(s))

    def text(self):
        return '\n'.join(self.out) + '\n'
```

```python
import sys
from asmlib import Asm

NAME = 'parallel_sum__ssm_conv_s5__glu_gated_bilinear__prompt'
HC_OFF, FLAG_OFF, E_OFF, ST_OFF, WS_SIZE = 0, 0xB00000, 0xB20000, 0xB30000, 0xB40000
OOB = 0x7ff00000
SPIN_MAX = 200000

a = Asm()
I = a.i

sW, sRB, sCS, sMT, sNT = 3, 4, 5, 6, 7
sT0, sT1, sT2, sT3 = 8, 9, 10, 11
sSPIN = 12
sSUB = 13
sMASK = 14
sONES = 15
P_X, P_LRE, P_LIM, P_BRE, P_BIM, P_CRE, P_CIM, P_LDT = 16, 18, 20, 22, 24, 26, 28, 30
P_DSK, P_BX, P_WG, P_WU, P_WD, P_OUT, P_DBG, P_WS = 32, 34, 36, 38, 40, 42, 44, 46
R_X, R_BRE, R_BIM, R_WF, R_CRE, R_CIM, R_WD, R_OUT, R_WS, R_E = 48, 52, 56, 60, 64, 68, 72, 76, 80, 84
sSOFF = 88
sWOFF = 89
sHST = 90
sHLD = 91
sCOFF = 92
sDOFF = 93
sEX = 94
sHI = 96
sT4, sT5 = 98, 99


def srd(r):
    return 's[%d:%d]' % (r, r + 3)


def sp(r):
    return 's[%d:%d]' % (r, r + 1)


def vr(r, n=1, k='v'):
    return '%s%d' % (k, r) if n == 1 else '%s[%d:%d]' % (k, r, r + n - 1)


def ar(r, n=1):
    return vr(r, n, 'a')


vL = 1
vHI = 2
vX = 4
vN = 8
vW = 12
vRA = 20
vRW = 24
vM, vR, vR2 = 28, 29, 30
vA = 32
vNAI = 34
vS2 = 36
vA16, vA32, vA128, vA1K, vG = 38, 40, 42, 44, 46
vHF = 48
vLIN = 49
vP = 50
vT = 52
vSA = 96
vXF = 128
aF = 0
aWF = 112
SLOT = 32768


def slot_of_stage(s):
    return (s + 1) % 5


def cmul(d, x, y, t):
    I('v_mul_f32 v%d, v%d, v%d' % (t, x, y))
    I('v_mul_f32 v%d, v%d, v%d' % (t + 1, x, y + 1))
    I('v_fma_f32 v%d, -v%d, v%d, v%d' % (t, x + 1, y + 1, t))
    I('v_fma_f32 v%d, v%d, v%d, v%d' % (d + 1, x + 1, y, t + 1))
    I('v_mov_b32 v%d, v%d' % (d, t))


def cfma(d, x, y, c, t):
    I('v_fma_f32 v%d, v%d, v%d, v%d' % (t, x, y, c))
    I('v_fma_f32 v%d, v%d, v%d, v%d' % (t + 1, x, y + 1, c + 1))
    I('v_fma_f32 v%d, -v%d, v%d, v%d' % (t, x + 1, y + 1, t))
    I('v_fma_f32 v%d, v%d, v%d, v%d' % (d + 1, x + 1, y, t + 1))
    I('v_mov_b32 v%d, v%d' % (d, t))


def bf16r(d, s):
    I('v_cvt_pk_bf16_f32 v%d, v%d, v%d' % (d, s, s))
    I('v_and_b32 v%d, s%d, v%d' % (d, sMASK, d))


def mk_srd(r, p, size):
    I('s_mov_b32 s%d, s%d' % (r, p))
    I('s_mov_b32 s%d, s%d' % (r + 1, p + 1))
    I('s_mov_b32 s%d, 0x%x' % (r + 2, size))
    I('s_mov_b32 s%d, 0x20000' % (r + 3))


def set_m0(lds_off):
    I('s_add_u32 m0, s%d, 0x%x' % (sSUB, lds_off))


def dma4(voff, r, soff):
    last = None
    for q in range(4):
        last = I('buffer_load_dwordx4 v%d, %s, s%d offen offset:%d lds' % (voff + q, srd(r), soff, 1024 * q))
    return last


a.raw('; @launch grid=(256,1,1) block=(256,1,1) lds=163840')
a.raw('.amdgcn_target "amdgcn-amd-amdhsa--gfx950"')
a.raw('.text')
a.raw('.globl %s_kernel' % NAME)
a.raw('.p2align 8')
a.raw('.type %s_kernel,@function' % NAME)
a.label('%s_kernel' % NAME)
I('s_cmp_ge_u32 s2, 256')
I('s_cbranch_scc1 L_end')
I('s_load_dwordx16 s[16:31], s[0:1], 0')
I('s_load_dwordx16 s[32:47], s[0:1], 64')
I('v_lshrrev_b32 v3, 6, v0')
I('v_and_b32 v%d, 63, v0' % vL)
I('v_readfirstlane_b32 s%d, v3' % sW)
I('v_lshrrev_b32 v%d, 5, v%d' % (vHI, vL))
I('s_and_b32 s%d, s2, 7' % sT0)
I('s_lshr_b32 s%d, s2, 3' % sT1)
I('s_and_b32 s%d, s%d, 1' % (sRB, sT0))
I('s_lshl_b32 s%d, s%d, 3' % (sRB, sRB))
I('s_and_b32 s%d, s%d, 7' % (sT2, sT1))
I('s_add_u32 s%d, s%d, s%d' % (sRB, sRB, sT2))
I('s_lshr_b32 s%d, s%d, 1' % (sCS, sT0))
I('s_lshl_b32 s%d, s%d, 2' % (sCS, sCS))
I('s_lshr_b32 s%d, s%d, 3' % (sT2, sT1))
I('s_add_u32 s%d, s%d, s%d' % (sCS, sCS, sT2))
I('s_lshl_b32 s%d, s%d, 2' % (sMT, sT0))
I('s_and_b32 s%d, s%d, 3' % (sT2, sT1))
I('s_add_u32 s%d, s%d, s%d' % (sMT, sMT, sT2))
I('s_lshr_b32 s%d, s%d, 2' % (sNT, sT1))
I('s_lshl_b32 s%d, s%d, 13' % (sSUB, sW))
I('s_mov_b32 s%d, 0xffff0000' % sMASK)
I('s_mov_b32 s%d, 0x3f803f80' % sONES)
I('s_mov_b32 s%d, 0' % sHI)
I('s_mov_b32 s%d, -1' % (sHI + 1))
t0, t1, t2, t3 = vT, vT + 1, vT + 2, vT + 3
I('v_bfe_u32 v%d, v%d, 4, 1' % (t0, vL))
I('v_lshl_add_u32 v%d, v%d, 2, v%d' % (t0, t0, vHI))
I('v_and_b32 v%d, 7, v%d' % (t1, vL))
I('v_xor_b32 v%d, v%d, v%d' % (t0, t0, t1))
I('v_lshlrev_b32 v%d, 4, v%d' % (t0, t0))
I('v_xor_b32 v%d, 32, v%d' % (t1, t0))
I('v_bfe_u32 v%d, v%d, 3, 2' % (t2, vL))
I('v_lshl_add_u32 v%d, v%d, 4, v%d' % (t2, vHI, t2))
I('v_lshlrev_b32 v%d, 10, v%d' % (t2, t2))
I('v_lshrrev_b32 v%d, 3, v%d' % (t3, vL))
I('v_lshlrev_b32 v%d, 10, v%d' % (t3, t3))
for q in range(4):
    sw = t1 if q & 1 else t0
    I('v_add_u32 v%d, v%d, v%d' % (vX + q, t2, sw))
    I('v_add_u32 v%d, v%d, v%d' % (vN + q, t3, sw))
    if q:
        I('v_add_u32 v%d, %d, v%d' % (vX + q, 3072 * q, vX + q))
        I('v_add_u32 v%d, %d, v%d' % (vN + q, 7168 * q, vN + q))
I('v_lshlrev_b32 v%d, 4, v%d' % (vLIN, vL))
I('s_lshl_b32 s%d, s%d, 17' % (sSOFF, sRB))
I('s_lshl_b32 s%d, s%d, 15' % (sT2, sW))
I('s_add_u32 s%d, s%d, s%d' % (sSOFF, sSOFF, sT2))
I('s_waitcnt lgkmcnt(0)')
mk_srd(R_X, P_X, 2048 * 1024)
mk_srd(R_WS, P_WS, WS_SIZE)
I('s_lshl_b32 s%d, s%d, 12' % (sT2, sCS))
I('s_add_u32 s%d, s%d, 0x%x' % (sT2, sT2, E_OFF))
I('s_add_u32 s%d, s%d, s%d' % (R_E, P_WS, sT2))
I('s_addc_u32 s%d, s%d, 0' % (R_E + 1, P_WS + 1))
I('s_mov_b32 s%d, 4096' % (R_E + 2))
I('s_mov_b32 s%d, 0x20000' % (R_E + 3))
vFL = 3
vEO = 19
I('s_lshl_b32 s%d, s%d, 2' % (sT2, sRB))
I('s_add_u32 s%d, s%d, s%d' % (sT2, sT2, sW))
I('s_mul_i32 s%d, s%d, %d' % (sHST, sT2, 176 * 1024))
I('s_lshl_b32 s%d, s%d, 4' % (sT2, sT2))
I('s_add_u32 s%d, s%d, s%d' % (sT2, sT2, sCS))
I('s_lshl_b32 s%d, s%d, 7' % (sT2, sT2))
I('s_add_u32 s%d, s%d, 0x%x' % (sT2, sT2, FLAG_OFF))
I('v_mov_b32 v%d, 0x%x' % (t0, OOB))
I('v_mov_b32 v%d, s%d' % (t1, sT2))
I('v_cmp_eq_u32 vcc, 0, v%d' % vL)
I('v_cndmask_b32 v%d, v%d, v%d, vcc' % (vFL, t0, t1))
I('s_lshl_b32 s%d, s%d, 8' % (sT2, sRB))
I('v_and_b32 v%d, 31, v%d' % (t1, vL))
I('v_lshlrev_b32 v%d, 3, v%d' % (t1, t1))
I('v_add_u32 v%d, s%d, v%d' % (t1, sT2, t1))
I('v_cmp_le_u32 vcc, 224, v0')
I('v_cndmask_b32 v%d, v%d, v%d, vcc' % (vEO, t0, t1))
I('v_mov_b32 v%d, 0' % t2)
I('v_mov_b32 v%d, -1' % (vT + 4))
I('v_mov_b32 v%d, -1' % (vT + 5))
I('buffer_store_dword v%d, v%d, %s, 0 offen sc1' % (t2, vFL, srd(R_WS)))
op_reset = I('buffer_store_dwordx2 %s, v%d, %s, 0 offen sc1' % (vr(vT + 4, 2), vEO, srd(R_E)))
op_x = []
for c in range(8):
    set_m0((c >> 1) * SLOT + (c & 1) * 4096)
    op_x.append(dma4(vX, R_X, sSOFF))
    if c < 7:
        I('s_add_u32 s%d, s%d, 128' % (sSOFF, sSOFF))
mk_srd(R_BRE, P_BRE, 512 * 1024)
mk_srd(R_BIM, P_BIM, 512 * 1024)
I('s_lshl_b32 s%d, s%d, 15' % (sSOFF, sCS))
I('s_lshl_b32 s%d, s%d, 7' % (sT2, sW))
I('s_add_u32 s%d, s%d, s%d' % (sSOFF, sSOFF, sT2))
set_m0(4 * SLOT)
dma4(vN, R_BRE, sSOFF)
set_m0(4 * SLOT + 4096)
op_b1 = dma4(vN, R_BIM, sSOFF)
I('s_add_u32 s%d, s%d, 512' % (sSOFF, sSOFF))
I('v_and_b32 v%d, 31, v%d' % (t0, vL))
I('s_lshl_b32 s%d, s%d, 6' % (sT2, sCS))
I('v_lshl_add_u32 v%d, v%d, 1, s%d' % (t0, t0, sT2))
pLRE, pLIM, pLDT = vT + 8, vT + 9, vT + 10
I('global_load_ushort v%d, v%d, %s' % (pLRE, t0, sp(P_LRE)))
I('global_load_ushort v%d, v%d, %s' % (pLIM, t0, sp(P_LIM)))
op_par = I('global_load_ushort v%d, v%d, %s' % (pLDT, t0, sp(P_LDT)))
I('s_bitcmp1_b32 s%d, 0' % sW)
I('s_cselect_b32 s%d, s%d, s%d' % (R_WF, P_WU, P_WG))
I('s_cselect_b32 s%d, s%d, s%d' % (R_WF + 1, P_WU + 1, P_WG + 1))
I('s_mov_b32 s%d, 0x%x' % (R_WF + 2, 512 * 3584))
I('s_mov_b32 s%d, 0x20000' % (R_WF + 3))
mk_srd(R_CRE, P_CRE, 512 * 1024)
mk_srd(R_CIM, P_CIM, 512 * 1024)
mk_srd(R_WD, P_WD, 1792 * 1024)
mk_srd(R_OUT, P_OUT, 2048 * 2048)
I('s_mov_b32 s%d, 4682' % sT3)
for q in range(7):
    I('v_add_u32 v%d, %d, v%d' % (t0, 64 * q, vL))
    I('v_mul_u32_u24 v%d, s%d, v%d' % (t1, sT3, t0))
    I('v_lshrrev_b32 v%d, 16, v%d' % (t1, t1))
    I('v_mul_u32_u24 v%d, %d, v%d' % (t1, 3584 - 224, t1))
    I('v_lshl_add_u32 v%d, v%d, 4, v%d' % (vW + q, t0, t1))
    if q & 3:
        I('v_subrev_u32 v%d, %d, v%d' % (vW + q, 1024 * (q & 3), vW + q))
for c in range(448):
    assert (c * 4682) >> 16 == c // 14
I('s_mul_i32 s%d, s%d, 224' % (sWOFF, sCS))
I('s_lshr_b32 s%d, s%d, 1' % (sT2, sW))
I('s_mul_i32 s%d, s%d, %d' % (sT2, sT2, 32 * 3584))
I('s_add_u32 s%d, s%d, s%d' % (sWOFF, sWOFF, sT2))
sSUBW = 100
I('s_and_b32 s%d, s%d, 1' % (sT2, sW))
I('s_lshl_b32 s%d, s%d, 7' % (sT2, sT2))
I('s_add_u32 s%d, s%d, s%d' % (sSUBW, sSUB, sT2))
I('v_bfe_u32 v%d, v%d, 1, 1' % (t0, vL))
I('v_bfe_u32 v%d, v%d, 2, 2' % (t1, vL))
I('v_lshl_add_u32 v%d, v%d, 2, v%d' % (t0, t0, t1))
I('v_xor_b32 v%d, v%d, v%d' % (t0, t0, vHI))
I('v_lshlrev_b32 v%d, 4, v%d' % (t0, t0))
I('v_and_b32 v%d, 31, v%d' % (t1, vL))
I('v_lshl_add_u32 v%d, v%d, 7, v%d' % (t0, t1, t0))
I('v_add_u32 v%d, s%d, v%d' % (vRA, sSUB, t0))
for j in range(1, 4):
    I('v_xor_b32 v%d, %d, v%d' % (vRA + j, 32 * j, vRA))
I('v_bfe_u32 v%d, v%d, 4, 1' % (t0, vL))
I('v_mul_u32_u24 v%d, %d, v%d' % (t0, 8192 + 128, t0))
I('v_bfe_u32 v%d, v%d, 2, 2' % (t1, vL))
I('v_lshl_add_u32 v%d, v%d, 3, v%d' % (t1, vHI, t1))
I('v_mul_u32_u24 v%d, 224, v%d' % (t1, t1))
I('v_add_u32 v%d, v%d, v%d' % (t0, t0, t1))
I('v_and_b32 v%d, 1, v%d' % (t1, vL))
I('v_lshl_add_u32 v%d, v%d, 4, v%d' % (t0, t1, t0))
I('v_bfe_u32 v%d, v%d, 1, 1' % (t1, vL))
I('v_lshl_add_u32 v%d, v%d, 3, v%d' % (vRW, t1, t0))
I('v_add_u32 v%d, 0x10000, v%d' % (vRW + 1, vRW))
I('v_add_u32 v%d, 0x20000, v%d' % (vRW + 2, vRW))
vTR = 27
I('v_bfe_u32 v%d, v%d, 2, 1' % (t0, vL))
I('v_bfe_u32 v%d, v%d, 3, 2' % (t1, vL))
I('v_lshlrev_b32 v%d, 2, v%d' % (t1, t1))
I('v_lshl_add_u32 v%d, v%d, 4, v%d' % (t0, t0, t1))
I('v_and_b32 v%d, 3, v%d' % (t1, vL))
I('v_add_u32 v%d, v%d, v%d' % (vTR, t0, t1))
I('v_lshl_add_u32 v%d, v%d, 5, v%d' % (t0, vHI, vTR))
I('v_lshlrev_b32 v%d, 4, v%d' % (vHF, t0))
sHS2 = 101
I('s_lshr_b32 s%d, s%d, 2' % (sT2, sCS))
I('s_mul_i32 s%d, s%d, %d' % (sT2, sT2, 44 * 1024))
I('s_add_u32 s%d, s%d, s%d' % (sHST, sHST, sT2))
I('s_and_b32 s%d, s%d, 3' % (sT2, sCS))
I('s_mul_i32 s%d, s%d, %d' % (sHS2, sT2, 7 * 1024))
I('s_add_u32 s%d, s%d, s%d' % (sHS2, sHS2, sHST))
I('s_add_u32 s%d, s%d, %d' % (sHS2, sHS2, 16 * 1024))
I('s_lshl_b32 s%d, s%d, 12' % (sT2, sT2))
I('s_add_u32 s%d, s%d, s%d' % (sHST, sHST, sT2))
I('s_mul_i32 s%d, s%d, %d' % (sHLD, sMT, 2 * 176 * 1024))
I('s_mul_i32 s%d, s%d, %d' % (sT2, sW, 44 * 1024))
I('s_add_u32 s%d, s%d, s%d' % (sHLD, sHLD, sT2))
I('s_lshl_b32 s%d, s%d, 16' % (sCOFF, sNT))
I('s_lshl_b32 s%d, s%d, 8' % (sT2, sW))
I('s_add_u32 s%d, s%d, s%d' % (sCOFF, sCOFF, sT2))
I('s_mul_i32 s%d, s%d, %d' % (sDOFF, sW, 448 * 1024))
I('s_lshl_b32 s%d, s%d, 7' % (sT2, sNT))
I('s_add_u32 s%d, s%d, s%d' % (sDOFF, sDOFF, sT2))


def dma_w(stage):
    base = slot_of_stage(stage) * SLOT
    seq = []
    seq.append(lambda: I('s_add_u32 m0, s%d, 0x%x' % (sSUBW, base)))
    for q in range(7):
        if q == 4:
            seq.append(lambda: I('s_add_u32 m0, s%d, 0x%x' % (sSUBW, base + 4096)))
        seq.append(lambda q=q: I('buffer_load_dwordx4 v%d, %s, s%d offen offset:%d lds' % (vW + q, srd(R_WF), sWOFF, 1024 * (q & 3))))
    seq.append(lambda: I('s_add_u32 s%d, s%d, %d' % (sWOFF, sWOFF, 64 * 3584)))
    return seq


op_w = {}


def run_dma_w(stage):
    for f in dma_w(stage):
        r = f()
        if r is not None:
            op_w[stage] = r


def dma_fill(f, slot):
    base = slot * SLOT
    seq = []
    if f < 7:
        r, so, add = R_WD, sDOFF, f * 65536
    else:
        r, so, add = (R_CRE if f < 9 else R_CIM), sCOFF, ((f - 7) & 1) * 128
    for h in range(2):
        seq.append(lambda h=h: I('s_add_u32 m0, s%d, 0x%x' % (sSUB, base + 4096 * h)))
        seq.append(lambda h=h: I('s_add_u32 s%d, s%d, 0x%x' % (sT4, so, add + 32768 * h)))
        for q in range(4):
            seq.append(lambda q=q: I('buffer_load_dwordx4 v%d, %s, s%d offen offset:%d lds' % (vN + q, srd(r), sT4, 1024 * q)))
    return seq


op_fill = {}
slot_fill = {}


def run_dma_fill(f, slot):
    slot_fill[f] = slot
    for g in dma_fill(f, slot):
        r = g()
        if r is not None:
            op_fill[f] = r


a.wait(vm=op_reset)
I('s_and_b32 s%d, s2, 1' % sT2)
I('s_lshl_b32 s%d, s%d, 7' % (sT2, sT2))
I('v_mov_b32 v%d, s%d' % (t0, sT2))
I('v_mov_b32 v%d, 1' % t1)
I('s_barrier')
I('v_cmp_eq_u32 vcc, 0, v0')
I('s_and_saveexec_b64 %s, vcc' % sp(sEX))
I('s_cbranch_execz L_noadd')
a.raw('    global_atomic_add v%d, v%d, %s sc1' % (t0, t1, sp(P_DBG)))
a.label('L_noadd')
I('s_mov_b64 exec, %s' % sp(sEX))

vS1, vS2q = vT + 12, vT + 14
for k in range(4):
    I('v_mov_b32 v%d, 0' % (vT + 12 + k))


def stats(c):
    for d in range(16):
        x = vXF + 16 * c + d
        I('v_dot2c_f32_bf16 v%d, s%d, v%d' % (vS1 + (d & 1), sONES, x))
        I('v_dot2c_f32_bf16 v%d, v%d, v%d' % (vS2q + (d & 1), x, x))


for c in range(8):
    if c == 4:
        for j in range(4):
            I('v_add_u32 v%d, 0x10000, v%d' % (vRA + j, vRA + j))
    a.wait(vm=op_x[c])
    for j in range(4):
        last = I('ds_read_b128 %s, v%d offset:%d' % (vr(vXF + 16 * c + 4 * j, 4), vRA + j, ((c >> 1) & 1) * SLOT + (c & 1) * 4096))
    if c > 0:
        stats(c - 1)
    a.wait(lg=last)
    if c == 1:
        set_m0(0)
        dma4(vN, R_BRE, sSOFF)
        set_m0(4096)
        op_b2 = dma4(vN, R_BIM, sSOFF)
    elif c & 1:
        run_dma_w((c - 3) >> 1)
stats(7)
a.wait(vm=op_par)
I('v_lshlrev_b32 v%d, 16, v%d' % (pLRE, pLRE))
I('v_lshlrev_b32 v%d, 16, v%d' % (pLIM, pLIM))
I('v_lshlrev_b32 v%d, 16, v%d' % (pLDT, pLDT))
I('v_mul_f32 v%d, 0x3fb8aa3b, v%d' % (t0, pLDT))
I('v_exp_f32 v%d, v%d' % (t0, t0))
bf16r(t0, t0)
I('v_mul_f32 v%d, v%d, v%d' % (t1, t0, pLRE))
I('v_mul_f32 v%d, v%d, v%d' % (t2, t0, pLIM))
I('v_mul_f32 v%d, 0x3fb8aa3b, v%d' % (t1, t1))
I('v_exp_f32 v%d, v%d' % (t1, t1))
I('v_mul_f32 v%d, 0.15915494, v%d' % (t2, t2))
I('v_rndne_f32 v%d, v%d' % (t3, t2))
I('v_sub_f32 v%d, v%d, v%d' % (t2, t2, t3))
I('v_cos_f32 v%d, v%d' % (t3, t2))
I('v_sin_f32 v%d, v%d' % (t2, t2))
I('v_mul_f32 v%d, v%d, v%d' % (vA, t1, t3))
I('v_mul_f32 v%d, v%d, v%d' % (vA + 1, t1, t2))
I('v_sub_f32 v%d, 0, v%d' % (vNAI, vA + 1))
I('v_mul_f32 v%d, v%d, v%d' % (t0, pLRE, pLRE))
I('v_fmac_f32 v%d, v%d, v%d' % (t0, pLIM, pLIM))
I('v_rcp_f32 v%d, v%d' % (t0, t0))
I('v_subrev_f32 v%d, 1.0, v%d' % (t1, vA))
I('v_add_f32 v%d, v%d, v%d' % (t0, t0, t0))
I('v_mul_f32 v%d, v%d, v%d' % (t2, t1, pLRE))
I('v_fmac_f32 v%d, v%d, v%d' % (t2, vA + 1, pLIM))
I('v_mul_f32 v%d, v%d, v%d' % (t3, vA + 1, pLRE))
I('v_fma_f32 v%d, -v%d, v%d, v%d' % (t3, t1, pLIM, t3))
I('v_mul_f32 v%d, v%d, v%d' % (vS2, t2, t0))
I('v_mul_f32 v%d, v%d, v%d' % (vS2 + 1, t3, t0))
cmul(vA16, vA, vA, t0)
for _ in range(3):
    cmul(vA16, vA16, vA16, t0)
cmul(vA32, vA16, vA16, t0)
vA64 = vT + 4
cmul(vA64, vA32, vA32, t0)
cmul(vA128, vA64, vA64, t0)
cmul(vA1K, vA128, vA128, t0)
cmul(vA1K, vA1K, vA1K, t0)
cmul(vA1K, vA1K, vA1K, t0)
I('v_mov_b32 v%d, 1.0' % t2)
I('v_mov_b32 v%d, 0' % t3)
I('v_cndmask_b32 v%d, v%d, v%d, %s' % (vG, t2, vA16, sp(sHI)))
I('v_cndmask_b32 v%d, v%d, v%d, %s' % (vG + 1, t3, vA16 + 1, sp(sHI)))
I('s_bitcmp1_b32 s%d, 0' % sW)
I('s_cbranch_scc0 L_g1')
cmul(vG, vG, vA32, t0)
a.label('L_g1')
I('s_bitcmp1_b32 s%d, 1' % sW)
I('s_cbranch_scc0 L_g2')
cmul(vG, vG, vA64, t0)
a.label('L_g2')
I('v_add_f32 v%d, v%d, v%d' % (t0, vS1, vS1 + 1))
I('v_add_f32 v%d, v%d, v%d' % (t2, vS2q, vS2q + 1))
I('v_mov_b32 v%d, v%d' % (t1, t0))
I('v_mov_b32 v%d, v%d' % (t3, t2))
I('v_permlane32_swap_b32 v%d, v%d' % (t0, t1))
I('v_permlane32_swap_b32 v%d, v%d' % (t2, t3))
I('v_add_f32 v%d, v%d, v%d' % (t0, t0, t1))
I('v_add_f32 v%d, v%d, v%d' % (t2, t2, t3))
I('v_mul_f32 v%d, 0x3b000000, v%d' % (t0, t0))
I('v_mul_f32 v%d, 0x3b000000, v%d' % (t2, t2))
I('v_fma_f32 v%d, -v%d, v%d, v%d' % (t2, t0, t0, t2))
I('v_max_f32 v%d, 0, v%d' % (t2, t2))
bf16r(vM, t0)
bf16r(t2, t2)
I('v_add_f32 v%d, 0x3727c5ac, v%d' % (t2, t2))
bf16r(t2, t2)
I('v_sqrt_f32 v%d, v%d' % (t2, t2))
bf16r(t2, t2)
I('v_rcp_f32 v%d, v%d' % (vR, t2))
I('v_mul_f32 v%d, v%d, v%d' % (vR2, vR, vR))
I('v_mov_b32 v%d, v%d' % (vR2 + 1, vR2))
I('s_lshr_b32 s%d, s%d, 2' % (sT2, sCS))
I('s_lshl_b32 s%d, s%d, 14' % (sT2, sT2))
I('s_lshl_b32 s%d, s%d, 10' % (sT3, sRB))
I('s_add_u32 s%d, s%d, s%d' % (sT2, sT2, sT3))
I('s_lshl_b32 s%d, s%d, 8' % (sT3, sW))
I('s_add_u32 s%d, s%d, s%d' % (sT2, sT2, sT3))
I('s_add_u32 s%d, s%d, 0x%x' % (sT2, sT2, ST_OFF))
I('s_and_b32 s%d, s%d, 3' % (sT3, sCS))
I('s_cselect_b32 s%d, 0x%x, s%d' % (sT2, OOB, sT2))
I('v_lshl_add_u32 v%d, v%d, 3, s%d' % (t0, vTR, sT2))
I('v_mov_b32 v%d, 0x%x' % (t1, OOB))
I('v_cndmask_b32 v%d, v%d, v%d, %s' % (t0, t0, t1, sp(sHI)))
I('buffer_store_dwordx2 %s, v%d, %s, 0 offen sc1' % (vr(vM, 2), t0, srd(R_WS)))
SCR = SLOT + 7424
I('v_lshl_add_u32 v%d, v%d, 2, s%d' % (t0, vTR, sSUB))
I('ds_write_b32 v%d, v%d offset:%d' % (t0, vR, SCR))


def center(ks):
    out = []
    for d in range(4):
        x = vXF + 4 * ks + d
        p, q = vT + 2 * (d & 1), vT + 2 * (d & 1) + 1
        out.append('v_lshlrev_b32 v%d, 16, v%d' % (p, x))
        out.append('v_and_b32 v%d, s%d, v%d' % (q, sMASK, x))
        out.append('v_sub_f32 v%d, v%d, v%d' % (p, p, vM))
        out.append('v_sub_f32 v%d, v%d, v%d' % (q, q, vM))
        out.append('v_cvt_pk_bf16_f32 v%d, v%d, v%d' % (x, p, q))
    return out


I('s_sub_u32 s%d, 0x10000, s%d' % (sT2, sSUB))
for j in range(4):
    I('v_add_u32 v%d, s%d, v%d' % (vRA + j, sT2, vRA + j))
for s in center(0):
    I(s)
a.wait(vm=op_b1)
I('s_barrier')


def rd_b(ks, mat):
    c, j = ks >> 2, ks & 3
    buf = aWF + 8 * (ks & 1) + 4 * mat
    return I('ds_read_b128 %s, v%d offset:%d' % (ar(buf, 4), vRA + j, (c & 3) * 8192 + mat * 4096))


def rd_w(ks, tau):
    s, j = ks >> 2, ks & 3
    slot = slot_of_stage(s)
    last = None
    for e in range(2):
        off = (slot & 1) * SLOT + (j >> 1) * 16384 + (16 * (j & 1) + 4 * e) * 224 + 32 * tau
        last = I('ds_read_b64_tr_b16 %s, v%d offset:%d' % (ar(aWF + 16 + 4 * tau + 2 * e, 2), vRW + (slot >> 1), off))
    return last


rb_ops = {}
rb_ops[0] = [rd_b(0, 0), rd_b(0, 1)]
for ks in range(32):
    cen = center(ks + 1) if ks < 31 else []
    buf = aWF + 8 * (ks & 1)
    x = vr(vXF + 4 * ks, 4)
    if ks == 15:
        a.wait(vm=op_b2, lg=rb_ops[15][1])
        I('s_barrier')
        for j in range(4):
            I('v_subrev_u32 v%d, 0x20000, v%d' % (vRA + j, vRA + j))
    else:
        a.wait(lg=rb_ops[ks][1])
    I('v_mfma_f32_32x32x16_bf16 %s, %s, %s, %s' % (vr(vSA, 16), x, ar(buf, 4), '0' if ks == 0 else vr(vSA, 16)))
    if ks < 31:
        rb_ops[ks + 1] = [rd_b(ks + 1, 0), rd_b(ks + 1, 1)]
    for s in cen[:10]:
        I(s)
    I('v_mfma_f32_32x32x16_bf16 %s, %s, %s, %s' % (vr(vSA + 16, 16), x, ar(buf + 4, 4), '0' if ks == 0 else vr(vSA + 16, 16)))
    for s in cen[10:]:
        I(s)
    if ks == 15:
        run_dma_w(3)

vRT = vT + 16
I('v_lshl_add_u32 v%d, v%d, 6, s%d' % (t0, vHI, sSUB))
for k in range(4):
    last = I('ds_read_b128 %s, v%d offset:%d' % (vr(vRT + 4 * k, 4), t0, SCR + 16 * k))
a.wait(lg=last)
RE, IM = vSA, vSA + 16
for i in range(8):
    re, im, r = vr(RE + 2 * i, 2), vr(IM + 2 * i, 2), vr(vRT + 2 * i, 2)
    tp = vr(vT + 2 * (i & 1), 2)
    s2 = vr(vS2, 2)
    I('v_pk_mul_f32 %s, %s, %s' % (tp, re, r))
    I('v_pk_mul_f32 %s, %s, %s' % (im, im, r))
    I('v_pk_mul_f32 %s, %s, %s op_sel:[0,0] op_sel_hi:[1,0]' % (re, tp, s2))
    I('v_pk_fma_f32 %s, %s, %s, %s op_sel:[0,1,0] op_sel_hi:[1,1,1] neg_lo:[1,0,0] neg_hi:[1,0,0]' % (re, im, s2, re))
    I('v_pk_mul_f32 %s, %s, %s op_sel:[0,0] op_sel_hi:[1,0]' % (im, im, s2))
    I('v_pk_fma_f32 %s, %s, %s, %s op_sel:[0,1,0] op_sel_hi:[1,1,1]' % (im, tp, s2, im))
for r in range(1, 16):
    I('v_fmac_f32 v%d, v%d, v%d' % (RE + r, vA, RE + r - 1))
    I('v_fmac_f32 v%d, v%d, v%d' % (IM + r, vA, IM + r - 1))
    I('v_fmac_f32 v%d, v%d, v%d' % (RE + r, vNAI, IM + r - 1))
    I('v_fmac_f32 v%d, v%d, v%d' % (IM + r, vA + 1, RE + r - 1))
eLO, eHI, eW = vT + 4, vT + 6, vT + 8
I('v_mov_b32 v%d, v%d' % (eLO, RE + 15))
I('v_mov_b32 v%d, v%d' % (eHI, RE + 15))
I('v_mov_b32 v%d, v%d' % (eLO + 1, IM + 15))
I('v_mov_b32 v%d, v%d' % (eHI + 1, IM + 15))
I('v_permlane32_swap_b32 v%d, v%d' % (eLO, eHI))
I('v_permlane32_swap_b32 v%d, v%d' % (eLO + 1, eHI + 1))
cfma(eW, vA16, eLO, eHI, t0)
I('v_and_b32 v%d, 31, v%d' % (t2, vL))
I('v_lshlrev_b32 v%d, 3, v%d' % (t2, t2))
I('v_add_u32 v%d, s%d, v%d' % (t3, sSUB, t2))
last = I('ds_write_b64 v%d, %s offset:%d' % (t3, vr(eW, 2), SCR + 128))
a.wait(vm=op_w[0], lg=last)
I('s_barrier')
run_dma_w(4)
vE3 = vT + 10
for j in range(3):
    last = I('ds_read_b64 %s, v%d offset:%d' % (vr(vE3 + 2 * j, 2), t2, SCR + 128 + 8192 * j))
rw = {}
for tau in range(7):
    rw[(0, tau)] = rd_w(0, tau)
I('v_mov_b32 v%d, 0' % vP)
I('v_mov_b32 v%d, 0' % (vP + 1))
a.wait(lg=last)
for j in range(3):
    I('s_cmp_le_u32 s%d, %d' % (sW, j))
    I('s_cbranch_scc1 L_pdone')
    cfma(vP, vA32, vP, vE3 + 2 * j, t0)
a.label('L_pdone')
cfma(eW, vA32, vP, eW, t0)
I('v_cmp_eq_u32 vcc, -1, v%d' % eW)
I('v_mov_b32 v%d, 0x7fc00000' % t0)
I('v_cndmask_b32 v%d, v%d, v%d, vcc' % (eW, eW, t0))
I('buffer_store_dwordx2 %s, v%d, %s, 0 offen sc1' % (vr(eW, 2), vEO, srd(R_E)))
cfma(eHI, vA16, vP, eLO, t0)
I('v_cndmask_b32 v%d, v%d, v%d, %s' % (vP, vP, eHI, sp(sHI)))
I('v_cndmask_b32 v%d, v%d, v%d, %s' % (vP + 1, vP + 1, eHI + 1, sp(sHI)))

pend = []
for ks in range(32):
    s, j = ks >> 2, ks & 3
    x = vr(vXF + 4 * ks, 4)
    deferred = []
    for tau in range(7):
        acc = ar(aF + 16 * tau, 16)
        a.wait(lg=rw[(ks, tau)])
        I('v_mfma_f32_32x32x16_bf16 %s, %s, %s, %s' % (acc, ar(aWF + 16 + 4 * tau, 4), x, '0' if ks == 0 else acc))
        if ks == 31:
            for _ in range(2):
                if pend:
                    pend.pop(0)()
            continue
        if j == 3 and tau < 2:
            deferred.append(tau)
            if tau == 1:
                a.wait(vm=op_w[s + 1], lg=rw[(ks, 6)])
                I('s_barrier')
                for t in deferred:
                    rw[(ks + 1, t)] = rd_w(ks + 1, t)
                nxt = s + 5
                if nxt <= 7:
                    def mk(seq, st):
                        def wrap(f):
                            def g():
                                r = f()
                                if r is not None:
                                    op_w[st] = r
                            return g
                        return [wrap(f) for f in seq]
                    pend += mk(dma_w(nxt), nxt)
                else:
                    f = nxt - 8
                    slot_fill[f] = slot_of_stage(s)
                    def mk2(seq, ff):
                        def wrap(fn):
                            def g():
                                r = fn()
                                if r is not None:
                                    op_fill[ff] = r
                            return g
                        return [wrap(fn) for fn in seq]
                    pend += mk2(dma_fill(f, slot_of_stage(s)), f)
            continue
        rw[(ks + 1, tau)] = rd_w(ks + 1, tau)
        if pend:
            pend.pop(0)()
while pend:
    pend.pop(0)()
I('s_barrier')
HS = slot_of_stage(7)

for tau in range(7):
    b = vT + 20 * (tau & 1)
    for r in range(16):
        I('v_accvgpr_read_b32 v%d, a%d' % (b + r, aF + 16 * tau + r))
    for i in range(4):
        I('v_pk_mul_f32 %s, %s, %s' % (vr(b + 2 * i, 2), vr(b + 2 * i, 2), vr(vR2, 2)))
    for i in range(4):
        I('v_pk_mul_f32 %s, %s, %s' % (vr(b + 2 * i, 2), vr(b + 2 * i, 2), vr(b + 8 + 2 * i, 2)))
    for i in range(4):
        I('v_cvt_pk_bf16_f32 v%d, v%d, v%d' % (b + 16 + i, b + 2 * i, b + 2 * i + 1))
    if tau == 4:
        I('s_add_u32 s%d, s%d, 4096' % (sHS2, sHS2))
    I('buffer_store_dwordx4 %s, v%d, %s, s%d offen offset:%d sc1' % (vr(b + 16, 4), vHF, srd(R_WS), sHS2, 1024 * (tau & 3)))

I('v_and_b32 v%d, 1, v%d' % (t0, vL))
I('v_lshlrev_b32 v%d, 7, v%d' % (t0, t0))
I('s_mov_b32 s%d, 0' % sSPIN)
a.label('L_cnt')
I('global_load_dword v%d, v%d, %s sc1' % (t1, t0, sp(P_DBG)))
I('s_waitcnt vmcnt(0)')
I('v_cmp_ne_u32 vcc, 128, v%d' % t1)
I('s_add_u32 s%d, s%d, 1' % (sSPIN, sSPIN))
I('s_cmp_gt_u32 s%d, %d' % (sSPIN, SPIN_MAX))
I('s_cbranch_scc1 L_cnt_done')
I('s_nop 3')
I('s_cbranch_vccnz L_cnt')
a.label('L_cnt_done')
vEA, vED = vT + 4, vT + 12
I('v_and_b32 v%d, 31, v%d' % (t0, vL))
I('v_lshlrev_b32 v%d, 3, v%d' % (t0, t0))
I('v_lshlrev_b32 v%d, 11, v%d' % (t1, vHI))
I('v_sub_u32 v%d, v%d, v%d' % (t0, t0, t1))
I('s_lshl_b32 s%d, s%d, 8' % (sT2, sRB))
I('s_sub_u32 s%d, s%d, 2048' % (sT2, sT2))
I('v_add_u32 v%d, s%d, v%d' % (vEA, sT2, t0))
for k in range(1, 8):
    I('v_add_u32 v%d, %d, v%d' % (vEA + k, 256 * k, vEA))
I('s_mov_b32 s%d, 0' % sSPIN)
a.label('L_e')
for k in range(8):
    I('buffer_load_dwordx2 %s, v%d, %s, 0 offen sc1' % (vr(vED + 2 * k, 2), vEA + k, srd(R_E)))
I('s_waitcnt vmcnt(0)')
I('v_max_u32 v%d, v%d, v%d' % (t0, vED, vED + 2))
for k in range(2, 8):
    I('v_max_u32 v%d, v%d, v%d' % (t0, t0, vED + 2 * k))
I('v_cmp_eq_u32 vcc, -1, v%d' % t0)
I('s_add_u32 s%d, s%d, 1' % (sSPIN, sSPIN))
I('s_cmp_gt_u32 s%d, %d' % (sSPIN, SPIN_MAX))
I('s_cbranch_scc1 L_e_done')
I('s_nop 3')
I('s_cbranch_vccnz L_e')
a.label('L_e_done')
for k in range(1, 8):
    cfma(vED, vA128, vED, vED + 2 * k, t0)
hL, hH = vT + 4, vT + 6
I('v_mov_b32 v%d, v%d' % (hL, vED))
I('v_mov_b32 v%d, v%d' % (hH, vED))
I('v_mov_b32 v%d, v%d' % (hL + 1, vED + 1))
I('v_mov_b32 v%d, v%d' % (hH + 1, vED + 1))
I('v_permlane32_swap_b32 v%d, v%d' % (hL, hH))
I('v_permlane32_swap_b32 v%d, v%d' % (hL + 1, hH + 1))
cfma(hL, vA1K, hH, hL, t0)
cfma(hL, vG, hL, vP, t0)
for r in range(16):
    cmul(hL, hL, vA, t0)
    I('v_add_f32 v%d, v%d, v%d' % (RE + r, RE + r, hL))
    I('v_add_f32 v%d, v%d, v%d' % (IM + r, IM + r, hL + 1))
vPK = vT + 8
for i in range(8):
    I('v_cvt_pk_bf16_f32 v%d, v%d, v%d' % (vPK + i, RE + 2 * i, RE + 2 * i + 1))
    I('v_cvt_pk_bf16_f32 v%d, -v%d, -v%d' % (vPK + 8 + i, IM + 2 * i, IM + 2 * i + 1))
I('v_and_b32 v%d, 31, v%d' % (t0, vL))
I('v_lshlrev_b32 v%d, 6, v%d' % (t0, t0))
I('v_lshl_add_u32 v%d, v%d, 5, v%d' % (t0, vHI, t0))
I('s_add_u32 s%d, s%d, 0x%x' % (sT2, sSUB, HS * SLOT))
I('v_add_u32 v%d, s%d, v%d' % (t0, sT2, t0))
for comp in range(2):
    for h in range(2):
        last = I('ds_write_b128 v%d, %s offset:%d' % (t0, vr(vPK + 8 * comp + 4 * h, 4), 2048 * comp + 16 * h))
I('v_bfe_u32 v%d, v%d, 2, 2' % (t1, vL))
I('v_lshl_add_u32 v%d, v%d, 3, v%d' % (t1, vHI, t1))
I('v_lshlrev_b32 v%d, 6, v%d' % (t1, t1))
I('v_bfe_u32 v%d, v%d, 4, 1' % (t2, vL))
I('v_lshl_add_u32 v%d, v%d, 5, v%d' % (t1, t2, t1))
I('v_and_b32 v%d, 3, v%d' % (t2, vL))
I('v_lshl_add_u32 v%d, v%d, 3, v%d' % (t1, t2, t1))
I('v_add_u32 v%d, s%d, v%d' % (t1, sT2, t1))
a.wait(lg=last)
vHO = vT + 24
for k in range(4):
    for e in range(2):
        last = I('ds_read_b64_tr_b16 %s, v%d offset:%d' % (vr(vHO + 4 * k + 2 * e, 2), t1, 1024 * k + 256 * e))
a.wait(lg=last)
for k in range(4):
    op_hst = I('buffer_store_dwordx4 %s, v%d, %s, s%d offen offset:%d sc1' % (vr(vHO + 4 * k, 4), vLIN, srd(R_WS), sHST, 1024 * k))
run_dma_fill(4, HS)
a.wait(vm=op_hst)
I('v_mov_b32 v%d, 1' % t0)
I('buffer_store_dword v%d, v%d, %s, 0 offen sc1' % (t0, vFL, srd(R_WS)))

vRT2 = 12
vRB = 20
for j in range(4):
    I('v_add_u32 v%d, s%d, v%d' % (vRB + j, sSUB, vRB + j))
I('v_bfe_u32 v%d, v%d, 2, 2' % (t0, vL))
I('v_lshl_add_u32 v%d, v%d, 3, v%d' % (t1, vHI, t0))
I('v_lshlrev_b32 v%d, 7, v%d' % (t1, t1))
I('v_and_b32 v%d, 1, v%d' % (t2, vL))
I('v_lshl_add_u32 v%d, v%d, 3, v%d' % (t1, t2, t1))
I('v_lshrrev_b32 v%d, 1, v%d' % (t0, t0))
I('v_lshlrev_b32 v%d, 2, v%d' % (t0, t0))
I('v_lshl_add_u32 v%d, v%d, 1, v%d' % (t0, vHI, t0))
I('v_bfe_u32 v%d, v%d, 4, 1' % (t2, vL))
I('v_bfe_u32 v%d, v%d, 1, 1' % (t3, vL))
I('v_lshl_add_u32 v%d, v%d, 1, v%d' % (t2, t2, t3))
I('v_xor_b32 v%d, v%d, v%d' % (t0, t0, t2))
I('v_lshl_add_u32 v%d, v%d, 4, v%d' % (t1, t0, t1))
I('v_add_u32 v%d, s%d, v%d' % (vRT2, sSUB, t1))
I('v_xor_b32 v%d, %d, v%d' % (vRT2 + 1, 16 + 512, vRT2))
I('v_xor_b32 v%d, 64, v%d' % (vRT2 + 2, vRT2))
I('v_xor_b32 v%d, 64, v%d' % (vRT2 + 3, vRT2 + 1))
vTA = 4


def read_fill(f, areg):
    slot = slot_fill[f]
    src = vRT2 if f < 7 else vRB
    for k in range(4):
        I('v_add_u32 v%d, 0x%x, v%d' % (vTA + k, slot * SLOT, src + k))
    last = None
    for j in range(4):
        for n in range(2):
            d = areg + 8 * j + 4 * n
            if f < 7:
                for e in range(2):
                    last = I('ds_read_b64_tr_b16 %s, v%d offset:%d' % (ar(d + 2 * e, 2), vTA + 2 * n + e, 2048 * j))
            else:
                last = I('ds_read_b128 %s, v%d offset:%d' % (ar(d, 4), vTA + j, 4096 * n))
    return last


for f in range(6):
    a.wait(vm=op_fill[f])
    last = read_fill(f, 32 * f)
    a.wait(lg=last)
    run_dma_fill(f + 5, slot_fill[f]) if f + 5 <= 10 else None
I('v_bfe_u32 v%d, v%d, 2, 1' % (t0, vL))
I('v_lshlrev_b32 v%d, 4, v%d' % (t0, t0))
I('v_and_b32 v%d, 3, v%d' % (t1, vL))
I('v_add_u32 v%d, v%d, v%d' % (t0, t0, t1))
I('v_lshlrev_b32 v%d, 7, v%d' % (t0, t0))
I('s_lshl_b32 s%d, s%d, 5' % (sT2, sMT))
I('s_lshl_b32 s%d, s%d, 2' % (sT3, sW))
I('s_add_u32 s%d, s%d, s%d' % (sT2, sT2, sT3))
I('s_lshl_b32 s%d, s%d, 7' % (sT2, sT2))
I('s_add_u32 s%d, s%d, 0x%x' % (sT2, sT2, FLAG_OFF))
I('s_mov_b32 s%d, 0' % sSPIN)
I('s_mov_b64 exec, 0xff')
a.label('L_f')
I('buffer_load_dword v%d, v%d, %s, s%d offen sc1' % (t1, t0, srd(R_WS), sT2))
I('s_waitcnt vmcnt(0)')
I('v_cmp_ne_u32 vcc, 1, v%d' % t1)
I('s_add_u32 s%d, s%d, 1' % (sSPIN, sSPIN))
I('s_cmp_gt_u32 s%d, %d' % (sSPIN, SPIN_MAX))
I('s_cbranch_scc1 L_f_done')
I('s_nop 3')
I('s_cbranch_vccnz L_f')
a.label('L_f_done')
I('s_mov_b64 exec, -1')

def kidx(f, j):
    if f < 7:
        return 16 + 4 * f + j
    comp, half = (f - 7) >> 1, (f - 7) & 1
    return (2 * half + (j >> 1)) * 4 + comp * 2 + (j & 1)


steps = [(f, j) for f in range(11) for j in range(4)]
vLM = 8
I('v_mov_b32 v%d, v%d' % (vLM, vLIN))
I('v_add_u32 v%d, %d, v%d' % (vLM + 1, 176 * 1024, vLIN))
DEPTH = 24


def areg_of(n, m):
    k = (n % DEPTH) * 2 + m
    return vr(128 + 4 * k, 4) if k < 32 else ar(192 + 4 * (k - 32), 4)


op_a = {}


def load_a(n):
    f, j = steps[n]
    I('s_add_u32 s%d, s%d, %d' % (sT5, sHLD, kidx(f, j) * 1024))
    for m in range(2):
        op_a[n] = I('buffer_load_dwordx4 %s, v%d, %s, s%d offen sc1' % (areg_of(n, m), vLM + m, srd(R_WS), sT5))


vXE, vSE, vDE, vOO = 32, 40, 48, 50
I('v_lshrrev_b32 v%d, 4, v%d' % (t0, vL))
I('s_lshl_b32 s%d, s%d, 6' % (sT2, sMT))
I('s_lshl_b32 s%d, s%d, 4' % (sT3, sW))
I('s_add_u32 s%d, s%d, s%d' % (sT2, sT2, sT3))
I('v_add_u32 v%d, s%d, v%d' % (t0, sT2, t0))
I('v_and_b32 v%d, 15, v%d' % (t1, vL))
I('s_lshl_b32 s%d, s%d, 7' % (sT3, sNT))
I('v_lshl_add_u32 v%d, v%d, 3, s%d' % (t1, t1, sT3))
I('v_lshl_add_u32 v%d, v%d, 10, v%d' % (t2, t0, t1))
I('v_lshlrev_b32 v%d, 1, v%d' % (vOO, t2))
I('v_lshlrev_b32 v%d, 3, v%d' % (t3, t0))
I('s_lshl_b32 s%d, s%d, 14' % (sT3, sW))
I('s_add_u32 s%d, s%d, 0x%x' % (sT3, sT3, ST_OFF))
for n in range(4):
    load_a(n)
for i in range(4):
    I('s_mov_b32 s%d, %d' % (sT2, 4096 * i))
    I('buffer_load_dwordx2 %s, v%d, %s, s%d offen' % (vr(vXE + 2 * i, 2), t2, srd(R_X), sT2))
    I('buffer_load_dwordx2 %s, v%d, %s, s%d offen offset:%d sc1' % (vr(vSE + 2 * i, 2), t3, srd(R_WS), sT3, 32 * i))
op_ep = I('global_load_dwordx2 %s, v%d, %s' % (vr(vDE, 2), t1, sp(P_DSK)))
for n in range(4, DEPTH):
    load_a(n)
vAC = 64
rf = {}
for n, (f, j) in enumerate(steps):
    if f >= 6 and j == 0:
        a.wait(lg=rf[f])
    a.wait(vm=op_a[n])
    breg = 32 * (f % 6) + 8 * j
    for m in range(2):
        for nn in range(2):
            acc = vr(vAC + 32 * m + 16 * nn, 16)
            I('v_mfma_f32_32x32x16_bf16 %s, %s, %s, %s' % (acc, ar(breg + 4 * nn, 4), areg_of(n, m), '0' if n == 0 else acc))
    if n + DEPTH < 44:
        load_a(n + DEPTH)
    if j == 3 and f + 6 <= 10:
        rf[f + 6] = read_fill(f + 6, 32 * f)

I('v_and_b32 v%d, 7, v%d' % (t0, vL))
I('v_xor_b32 v%d, v%d, v%d' % (t0, t0, vHI))
I('v_lshlrev_b32 v%d, 4, v%d' % (t0, t0))
I('v_and_b32 v%d, 31, v%d' % (t1, vL))
I('v_lshl_add_u32 v%d, v%d, 8, v%d' % (t0, t1, t0))
I('v_add_u32 v%d, s%d, v%d' % (vTA, sSUB, t0))
for jq in range(1, 4):
    I('v_xor_b32 v%d, %d, v%d' % (vTA + jq, 32 * jq, vTA))
for m in range(2):
    for nn in range(2):
        for jq in range(4):
            last = I('ds_write_b128 v%d, %s offset:%d' % (vTA + jq, vr(vAC + 32 * m + 16 * nn + 4 * jq, 4), m * SLOT + 128 * nn))
I('v_lshrrev_b32 v%d, 4, v%d' % (t0, vL))
I('v_and_b32 v%d, 15, v%d' % (t1, vL))
I('v_xor_b32 v%d, v%d, v%d' % (t1, t1, t0))
I('v_lshlrev_b32 v%d, 4, v%d' % (t1, t1))
I('v_lshl_add_u32 v%d, v%d, 8, v%d' % (t1, t0, t1))
I('s_lshr_b32 s%d, s%d, 1' % (sT2, sW))
I('s_lshl_b32 s%d, s%d, 15' % (sT2, sT2))
I('s_and_b32 s%d, s%d, 1' % (sT3, sW))
I('s_lshl_b32 s%d, s%d, 12' % (sT3, sT3))
I('s_add_u32 s%d, s%d, s%d' % (sT2, sT2, sT3))
I('v_add_u32 v%d, s%d, v%d' % (t0, sT2, t1))
I('v_xor_b32 v%d, %d, v%d' % (t1, 64 + 1024, t0))
vBS = 128
I('v_lshlrev_b32 v%d, 16, v%d' % (vT + 4, vDE))
I('v_and_b32 v%d, s%d, v%d' % (vT + 5, sMASK, vDE))
I('v_lshlrev_b32 v%d, 16, v%d' % (vT + 6, vDE + 1))
I('v_and_b32 v%d, s%d, v%d' % (vT + 7, sMASK, vDE + 1))
for i in range(4):
    b = vBS + 4 * i
    for h in range(2):
        I('v_lshlrev_b32 v%d, 16, v%d' % (b + 2 * h, vXE + 2 * i + h))
        I('v_and_b32 v%d, s%d, v%d' % (b + 2 * h + 1, sMASK, vXE + 2 * i + h))
    for h in range(2):
        u, v2 = vT + 8, vT + 9
        I('v_sub_f32 v%d, v%d, v%d' % (u, b + 2 * h, vSE + 2 * i))
        I('v_sub_f32 v%d, v%d, v%d' % (v2, b + 2 * h + 1, vSE + 2 * i))
        for mul in ((vSE + 2 * i + 1, vSE + 2 * i + 1), (vT + 4 + 2 * h, vT + 5 + 2 * h)):
            I('v_cvt_pk_bf16_f32 v%d, v%d, v%d' % (v2, u, v2))
            I('v_lshlrev_b32 v%d, 16, v%d' % (u, v2))
            I('v_and_b32 v%d, s%d, v%d' % (v2, sMASK, v2))
            I('v_mul_f32 v%d, v%d, v%d' % (u, u, mul[0]))
            I('v_mul_f32 v%d, v%d, v%d' % (v2, v2, mul[1]))
        I('v_cvt_pk_bf16_f32 v%d, v%d, v%d' % (v2, u, v2))
        I('v_lshlrev_b32 v%d, 16, v%d' % (u, v2))
        I('v_and_b32 v%d, s%d, v%d' % (v2, sMASK, v2))
        I('v_add_f32 v%d, v%d, v%d' % (b + 2 * h, b + 2 * h, u))
        I('v_add_f32 v%d, v%d, v%d' % (b + 2 * h + 1, b + 2 * h + 1, v2))
a.wait(lg=last)
I('s_barrier')
vRD = 160
rd = {}
for i in range(4):
    for p in range(4):
        rd[(i, p)] = I('ds_read_b128 %s, v%d offset:%d' % (vr(vRD + 16 * i + 4 * p, 4), t1 if i & 1 else t0, 8192 * p + 2048 * (i >> 1)))
for i in range(4):
    a.wait(lg=rd[(i, 3)])
    b = vBS + 4 * i
    r = vRD + 16 * i
    for h in range(2):
        I('v_pk_add_f32 %s, %s, %s' % (vr(r + 2 * h, 2), vr(r + 2 * h, 2), vr(r + 4 + 2 * h, 2)))
        I('v_pk_add_f32 %s, %s, %s' % (vr(r + 8 + 2 * h, 2), vr(r + 8 + 2 * h, 2), vr(r + 12 + 2 * h, 2)))
        I('v_pk_add_f32 %s, %s, %s' % (vr(r + 2 * h, 2), vr(r + 2 * h, 2), vr(r + 8 + 2 * h, 2)))
        I('v_pk_add_f32 %s, %s, %s' % (vr(b + 2 * h, 2), vr(b + 2 * h, 2), vr(r + 2 * h, 2)))
    I('s_mov_b32 s%d, %d' % (sT2, 8192 * i))
    I('buffer_store_dwordx4 %s, v%d, %s, s%d offen' % (vr(b, 4), vOO, srd(R_OUT), sT2))
a.label('L_end')
I('s_endpgm')
a.raw('.section .rodata,"a"')
a.raw('.p2align 6')
a.raw('.amdhsa_kernel %s_kernel' % NAME)
a.raw('  .amdhsa_next_free_vgpr 512')
a.raw('  .amdhsa_next_free_sgpr 102')
a.raw('  .amdhsa_accum_offset 256')
a.raw('  .amdhsa_group_segment_fixed_size 0')
a.raw('  .amdhsa_kernarg_size 128')
a.raw('  .amdhsa_user_sgpr_count 2')
a.raw('  .amdhsa_user_sgpr_kernarg_segment_ptr 1')
a.raw('  .amdhsa_system_sgpr_workgroup_id_x 1')
a.raw('.end_amdhsa_kernel')
out = sys.argv[1] if len(sys.argv) > 1 else 'cdna_kernels/%s.s' % NAME
open(out, 'w').write(a.text())
print('instructions', a.ninstr, 'auto nops', a.nops, 'vmem', a.vm, 'ds', a.lg)
```
